```python
import torch

def _softmax(x, axis=-1):
    return torch.softmax(x, dim=axis)
def _gelu(x):
    return torch.nn.functional.gelu(x, approximate="tanh")
def _silu(x):
    return torch.nn.functional.silu(x)
def _sigmoid(x):
    return torch.sigmoid(x)
def _layernorm(x, axis=-1, eps=1e-5):
    m = x.mean(dim=axis, keepdim=True)
    v = x.var(dim=axis, keepdim=True, unbiased=False)
    return (x - m) / torch.sqrt(v + eps)
def _scatter_add(tgt, idx, src, axis=0):
    return tgt.clone().index_add_(axis, idx, src)
def _segment_sum(src, seg, n):
    out = torch.zeros((n,) + src.shape[1:], dtype=src.dtype)
    return out.index_add_(0, seg, src)
def _pad(x, pw):
    flat = tuple(v for pair in reversed(pw) for v in pair)
    return torch.nn.functional.pad(x, flat)

kernel_name = 'sequential_preLN__sliding_block__mixer_channel_mlp__prompt'

def setup_inputs():

    _w = (lambda a: (lambda t: t.to(torch.bfloat16) if t.is_floating_point() else t)(torch.as_tensor(a)))
    def _A_setup():
        B, S, D = 1, 2048, 640
        return {
            "x": _w((lambda *s: torch.randn(*s, dtype=torch.bfloat16) * 0.05)(B, S, D)),
            "wqkv": _w((lambda *s: torch.randn(*s, dtype=torch.bfloat16) * 0.05)(D, 3 * D)),
            "wo": _w((lambda *s: torch.randn(*s, dtype=torch.bfloat16) * 0.05)(D, D)),
        }
    _A_in = _A_setup()

    def _B_setup():
        B, S, D, F = 1, 2048, 640, 1536
        return {
            "x": _w((lambda *s: torch.randn(*s, dtype=torch.bfloat16) * 0.05)(B, S, D)),
            "w1": _w((lambda *s: torch.randn(*s, dtype=torch.bfloat16) * 3.2)(D, F) * (D ** -0.5)),
            "b1": _w((lambda *s: torch.randn(*s, dtype=torch.bfloat16) * 1.6)(F)),
            "w2": _w((lambda *s: torch.randn(*s, dtype=torch.bfloat16) * 0.2)(F, D) * (F ** -0.5)),
            "b2": _w((lambda *s: torch.randn(*s, dtype=torch.bfloat16) * 0.4)(D)),
        }
    _B_in = _B_setup()

    return {
        "A_x": _A_in["x"],
        "A_wqkv": _A_in["wqkv"],
        "A_wo": _A_in["wo"],
        "B_x": _B_in["x"],
        "B_w1": _B_in["w1"],
        "B_b1": _B_in["b1"],
        "B_w2": _B_in["w2"],
        "B_b2": _B_in["b2"],
    }

def reference(A_x, A_wqkv, A_wo, B_x, B_w1, B_b1, B_w2, B_b2):
    def _A_ref(x, wqkv, wo):
        B, S, D = x.shape
        H = 32; Dh = D // H; W = 256
        qkv = (lambda x, *d: x.permute(*d))((x @ wqkv).reshape(B, S, 3, H, Dh), 2, 0, 3, 1, 4)
        q, k, v = qkv[0], qkv[1], qkv[2]
        scores = torch.einsum("bhqd,bhkd->bhqk", q, k) * (Dh ** -0.5)
        idx = torch.arange(S)
        mask = (idx[:, None] - idx[None, :] >= 0) & (idx[:, None] - idx[None, :] < W)
        scores = torch.where(mask[None, None], scores, -1e9)
        p = _softmax(scores, axis=-1)
        o = torch.einsum("bhqk,bhkd->bhqd", p, v)
        return (lambda x, *d: x.permute(*d))(o, 0, 2, 1, 3).reshape(B, S, D) @ wo

    def _B_ref(x, w1, b1, w2, b2):
        y = _layernorm(x, axis=-1)
        h = _gelu(torch.einsum("bsd,df->bsf", y, w1) + b1)
        return torch.einsum("bsf,fd->bsd", h, w2) + b2

    x = A_x
    h = x + _A_ref(_layernorm(x, axis=-1), A_wqkv, A_wo)
    h2 = h + _B_ref(_layernorm(h, axis=-1), B_w1, B_b1, B_w2, B_b2)
    return h2
```

```python
class Kern:
    def __init__(self, name, block, lds, grid=256):
        self.name = name; self.block = block; self.lds = lds; self.grid = grid
        self.lines = []
        self.v_next = 1
        self.s_next = 4
        self.v_max = 1; self.s_max = 4
        self.uid = 0
    def __call__(self, s):
        for l in s.strip('\n').split('\n'):
            self.lines.append('    ' + l.strip())
    def comment(self, s): self.lines.append('    ; ' + s)
    def label(self, l): self.lines.append(f'{l}:')
    def newlabel(self, base='L'):
        self.uid += 1
        return f'{self.name}_{base}{self.uid}'
    def v(self, n=1, align=None):
        if align is None: align = 1 if n == 1 else (2 if n < 4 else 4)
        while self.v_next % align: self.v_next += 1
        r = self.v_next; self.v_next += n
        self.v_max = max(self.v_max, self.v_next)
        return r
    def s(self, n=1, align=None):
        if align is None: align = 1 if n == 1 else (2 if n < 4 else 4)
        while self.s_next % align: self.s_next += 1
        r = self.s_next; self.s_next += n
        self.s_max = max(self.s_max, self.s_next)
        assert self.s_next <= 100, 'out of sgprs'
        return r
    def nop(self, n):
        while n > 0:
            k = min(n, 16); self(f's_nop {k-1}'); n -= k
    def srd(self, sreg, base_lo, base_hi, size, off=0):
        if off:
            self(f's_add_u32 s{sreg}, s{base_lo}, {off}')
            self(f's_addc_u32 s{sreg+1}, s{base_hi}, 0')
            self(f's_and_b32 s{sreg+1}, s{sreg+1}, 0xffff')
        else:
            self(f's_mov_b32 s{sreg}, s{base_lo}')
            self(f's_and_b32 s{sreg+1}, s{base_hi}, 0xffff')
        self(f's_mov_b32 s{sreg+2}, {size}')
        self(f's_mov_b32 s{sreg+3}, 0x20000')
    def text(self):
        out = [f'.globl {self.name}', '.p2align 8', f'.type {self.name},@function', f'{self.name}:']
        out += self.lines
        return '\n'.join(out)
    def desc(self):
        nv = max(8, (self.v_max + 7) // 8 * 8)
        assert nv <= 512
        acc = min(256, (nv + 3) // 4 * 4)
        return '\n'.join(['.p2align 6', f'.amdhsa_kernel {self.name}',
            f'  .amdhsa_next_free_vgpr {nv}', f'  .amdhsa_next_free_sgpr {max(16, self.s_max)}', f'  .amdhsa_accum_offset {acc}',
            '  .amdhsa_group_segment_fixed_size 0', '  .amdhsa_kernarg_size 88', '  .amdhsa_user_sgpr_count 2',
            '  .amdhsa_user_sgpr_kernarg_segment_ptr 1', '  .amdhsa_system_sgpr_workgroup_id_x 1',
            '  .amdhsa_float_denorm_mode_32 3',
            '.end_amdhsa_kernel'])

def vr(r, n): return f'v[{r}:{r+n-1}]' if n > 1 else f'v{r}'
def sr(r, n): return f's[{r}:{r+n-1}]' if n > 1 else f's{r}'

HEADER = open('sequential_preLN__sliding_block__mixer_channel_mlp__prompt.s.ref').read().split('\n')
def build(kernels):
    lines = []
    for l in HEADER:
        if l.startswith('; @launch'):
            for k in kernels:
                lines.append(f'; @launch kernel={k.name} grid=({k.grid},1,1) block=({k.block},1,1) lds={k.lds}')
            continue
        if l.startswith(';'): lines.append(l)
        else: break
    lines += ['.amdgcn_target "amdgcn-amd-amdhsa--gfx950"', '.text']
    seen = []
    for k in kernels:
        if k.name in seen: continue
        seen.append(k.name); lines.append(k.text())
    lines.append('.section .rodata,"a"')
    seen = []
    for k in kernels:
        if k.name in seen: continue
        seen.append(k.name); lines.append(k.desc())
    return '\n'.join(lines) + '\n'
```

```python
from asmlib import *
QKV_OFF=0; O_OFF=8<<20; H_OFF=11<<20; ST_OFF=14<<20; G_OFF=16<<20
PLANE = 32768
QS = 20**-0.5*1.4426950408889634
import struct
def f2u(x): return struct.unpack('<I', struct.pack('<f', x))[0]

def make_k1():
    k = Kern('k1_qkv_kernel', 512, 131072+2048)
    NST = 10
    k('s_cmp_ge_u32 s2, 256')
    Lend = k.newlabel('end')
    k(f's_cbranch_scc1 {Lend}')
    sP = k.s(4); sWs = k.s(2)
    k(f's_load_dwordx4 {sr(sP,4)}, s[0:1], 0')
    k(f's_load_dwordx2 {sr(sWs,2)}, s[0:1], 80')
    sWave=k.s(); sWm=k.s(); sWn=k.s(); sRb=k.s(); sCt=k.s(); sT=k.s(); sT2=k.s()
    vLane=k.v(); vT=k.v(); vT2=k.v(); vT3=k.v(); vN=k.v(); vG=k.v()
    k(f'v_lshrrev_b32 v{vT}, 6, v0')
    k(f'v_and_b32 v{vLane}, 63, v0')
    k(f'v_readfirstlane_b32 s{sWave}, v{vT}')
    k(f'v_and_b32 v{vN}, 15, v{vLane}')
    k(f'v_lshrrev_b32 v{vG}, 4, v{vLane}')
    k(f's_and_b32 s{sT}, s2, 7')
    k(f's_lshr_b32 s{sT2}, s2, 3')
    k(f's_and_b32 s{sRb}, s{sT}, 3')
    k(f's_lshl_b32 s{sRb}, s{sRb}, 2')
    k(f's_and_b32 s3, s{sT2}, 3')
    k(f's_add_u32 s{sRb}, s{sRb}, s3')
    k(f's_lshr_b32 s{sCt}, s{sT}, 2')
    k(f's_lshl_b32 s{sCt}, s{sCt}, 3')
    k(f's_lshr_b32 s3, s{sT2}, 2')
    k(f's_add_u32 s{sCt}, s{sCt}, s3')
    k(f's_lshr_b32 s{sWm}, s{sWave}, 2')
    k(f's_and_b32 s{sWn}, s{sWave}, 3')
    vx0=k.v(); vx1=k.v(); vw=k.v()
    sMul=k.s()
    k(f'v_lshrrev_b32 v{vT}, 3, v{vLane}')
    k(f's_lshl_b32 s3, s{sRb}, 7')
    k(f's_lshl_b32 s{sT}, s{sWave}, 4')
    k(f's_add_u32 s3, s3, s{sT}')
    k(f'v_add_u32 v{vT}, s3, v{vT}')
    k(f's_movk_i32 s{sMul}, 1280')
    k(f'v_mul_lo_u32 v{vT}, v{vT}, s{sMul}')
    k(f'v_and_b32 v{vT2}, 7, v{vLane}')
    k(f'v_xor_b32 v{vT3}, v{vT2}, v{vG}')
    k(f'v_lshl_add_u32 v{vx0}, v{vT3}, 4, v{vT}')
    k(f'v_xor_b32 v{vT3}, 4, v{vT3}')
    k(f'v_lshl_add_u32 v{vx1}, v{vT3}, 4, v{vT}')
    k(f'v_add_u32 v{vx1}, {8*1280}, v{vx1}')
    k(f's_and_b32 s3, s{sWave}, 1')
    k(f's_lshl_b32 s3, s3, 2')
    k(f'v_add_u32 v{vT}, s3, v{vG}')
    k(f'v_lshlrev_b32 v{vT}, 1, v{vT}')
    k(f'v_sub_u32 v{vT}, v{vN}, v{vT}')
    k(f'v_and_b32 v{vT}, 15, v{vT}')
    k(f's_lshl_b32 s3, s{sWave}, 3')
    k(f'v_add_u32 v{vT2}, s3, v{vG}')
    k(f's_movk_i32 s{sMul}, 3840')
    k(f'v_mul_lo_u32 v{vT2}, v{vT2}, s{sMul}')
    k(f's_mul_i32 s3, s{sCt}, 240')
    k(f'v_lshl_add_u32 v{vw}, v{vT}, 4, v{vT2}')
    k(f'v_add_u32 v{vw}, s3, v{vw}')
    vxa = [[k.v(), k.v()] for _ in range(4)]
    vwa = [k.v(), k.v()]
    k(f'v_lshrrev_b32 v{vT}, 1, v{vN}')
    k(f'v_xor_b32 v{vT}, v{vT}, v{vG}')
    k(f'v_lshlrev_b32 v{vT}, 4, v{vT}')
    k(f'v_lshl_add_u32 v{vT}, v{vN}, 7, v{vT}')
    for tl in range(4):
        k(f's_add_u32 s3, s{sWn}, {tl}')
        k(f's_and_b32 s3, s3, 3')
        k(f's_lshl_b32 s3, s3, 11')
        k(f's_lshl_b32 s{sT}, s{sWm}, 13')
        k(f's_add_u32 s3, s3, s{sT}')
        k(f'v_add_u32 v{vxa[tl][0]}, s3, v{vT}')
        k(f'v_xor_b32 v{vxa[tl][1]}, 64, v{vxa[tl][0]}')
    vR=k.v(); vC=k.v()
    k(f'v_lshrrev_b32 v{vR}, 2, v{vN}')
    k(f'v_and_b32 v{vC}, 3, v{vLane}')
    k(f'v_and_b32 v{vT}, 1, v{vG}')
    k(f'v_lshl_add_u32 v{vT}, v{vT}, 2, v{vR}')
    k(f'v_lshlrev_b32 v{vT}, 1, v{vT}')
    k(f'v_lshrrev_b32 v{vT2}, 1, v{vC}')
    k(f'v_add_u32 v{vT}, v{vT}, v{vT2}')
    k(f'v_lshl_add_u32 v{vT2}, v{vG}, 3, v{vR}')
    k(f'v_lshlrev_b32 v{vT2}, 8, v{vT2}')
    k(f'v_and_b32 v{vT3}, 1, v{vC}')
    k(f'v_lshl_add_u32 v{vT2}, v{vT3}, 3, v{vT2}')
    for pl in range(2):
        k(f's_xor_b32 s3, s{sWm}, {pl}')
        k(f's_lshl_b32 s{sT}, s{sWn}, 1')
        k(f's_add_u32 s3, s3, s{sT}')
        k(f's_lshl_b32 s3, s3, 1')
        k(f'v_add_u32 v{vT3}, s3, v{vT}')
        k(f'v_and_b32 v{vT3}, 15, v{vT3}')
        k(f'v_lshl_add_u32 v{vwa[pl]}, v{vT3}, 4, v{vT2}')
    xf = [[k.v(4) for _ in range(4)] for _ in range(2)]
    wf = [[k.v(4) for _ in range(2)] for _ in range(2)]
    acc = [[k.v(4) for _ in range(4)] for _ in range(2)]
    cs = k.v(4); ones = k.v(4)
    s1a=k.v(); s1b=k.v(); qa=k.v(); qb=k.v(); t0=k.v(); t1=k.v(); t2=k.v(); t3=k.v()
    for pl in range(2):
        for tl in range(4):
            for i in range(4): k(f'v_mov_b32 v{acc[pl][tl]+i}, 0')
    for i in range(4):
        k(f'v_mov_b32 v{cs+i}, 0'); k(f'v_mov_b32 v{ones+i}, 0x3f803f80')
    for r in (s1a,s1b,qa,qb): k(f'v_mov_b32 v{r}, 0')
    sX=k.s(4); sW=k.s(4); sO=k.s(4)
    sXoff=k.s(); sWoff=k.s(); sWoff2=k.s(); sWv=k.s()
    k(f's_lshl_b32 s{sWv}, s{sWave}, 11')
    k(f's_mov_b32 s{sXoff}, 0'); k(f's_mov_b32 s{sWoff}, 0'); k(f's_mov_b32 s{sWoff2}, {4*3840}')
    k('s_waitcnt lgkmcnt(0)')
    k.srd(sX, sP, sP+1, 2048*1280)
    k.srd(sW, sP+2, sP+3, 640*3840)
    k.srd(sO, sWs, sWs+1, 240*PLANE, QKV_OFF)

    def dma(st):
        b = (st % 4)*32768
        k(f's_add_u32 m0, s{sWv}, {b}')
        k(f's_nop 0')
        k(f'buffer_load_dwordx4 v{vx0}, {sr(sX,4)}, s{sXoff} offen lds')
        k(f's_add_u32 m0, s{sWv}, {b+1024}')
        k(f's_nop 0')
        k(f'buffer_load_dwordx4 v{vx1}, {sr(sX,4)}, s{sXoff} offen lds')
        k(f's_add_u32 m0, s{sWv}, {b+16384}')
        k(f's_nop 0')
        k(f'buffer_load_dwordx4 v{vw}, {sr(sW,4)}, s{sWoff} offen lds')
        k(f's_add_u32 m0, s{sWv}, {b+16384+1024}')
        k(f's_nop 0')
        k(f'buffer_load_dwordx4 v{vw}, {sr(sW,4)}, s{sWoff2} offen lds')
        k(f's_add_u32 s{sXoff}, s{sXoff}, 128')
        k(f's_add_u32 s{sWoff}, s{sWoff}, {64*3840}')
        k(f's_add_u32 s{sWoff2}, s{sWoff2}, {64*3840}')
    hi = [False]
    def set_hi(want):
        if hi[0] != want:
            for tl in range(4):
                for kp in range(2): k(f'v_xor_b32 v{vxa[tl][kp]}, 0x10000, v{vxa[tl][kp]}')
            for pl in range(2): k(f'v_xor_b32 v{vwa[pl]}, 0x10000, v{vwa[pl]}')
            hi[0] = want
    def reads(st, kp, S):
        b = st % 4
        set_hi(b >= 2)
        base = (b & 1)*32768
        for pl in range(2):
            for s_ in range(2):
                k(f'ds_read_b64_tr_b16 {vr(wf[S][pl]+2*s_,2)}, v{vwa[pl]} offset:{base+16384+kp*8192+s_*1024}')
        for tl in range(4):
            k(f'ds_read_b128 {vr(xf[S][tl],4)}, v{vxa[tl][kp]} offset:{base}')
    def compute(S):
        mf = []
        for tl in range(4):
            for pl in range(2):
                mf.append(f'v_mfma_f32_16x16x32_bf16 {vr(acc[pl][tl],4)}, {vr(wf[S][pl],4)}, {vr(xf[S][tl],4)}, {vr(acc[pl][tl],4)}')
        mf.append(f'v_mfma_f32_16x16x32_bf16 {vr(cs,4)}, {vr(wf[S][0],4)}, {vr(ones,4)}, {vr(cs,4)}')
        va = []
        for d in range(4):
            r = xf[S][0]+d
            lo, hi_ = (t0,t1) if d%2==0 else (t2,t3)
            va += [f'v_lshlrev_b32 v{lo}, 16, v{r}', f'v_and_b32 v{hi_}, 0xffff0000, v{r}',
                   f'v_add_f32 v{s1a}, v{s1a}, v{lo}', f'v_add_f32 v{s1b}, v{s1b}, v{hi_}',
                   f'v_fmac_f32 v{qa}, v{lo}, v{lo}', f'v_fmac_f32 v{qb}, v{hi_}, v{hi_}']
        j = 0
        for i, m in enumerate(mf):
            k(m)
            n = 3 if i < 8 else 0
            for _ in range(n):
                if j < len(va): k(va[j]); j += 1
        while j < len(va): k(va[j]); j += 1

    for st in range(3): dma(st)
    k('s_waitcnt vmcnt(8)')
    k('s_barrier')
    reads(0, 0, 0)
    for st in range(NST):
        reads(st, 1, 1)
        k('s_waitcnt lgkmcnt(8)')
        compute(0)
        if st < NST-1:
            k(f's_waitcnt vmcnt({4 if st+2 <= NST-1 else 0})')
            k('s_barrier')
            if st+3 <= NST-1: dma(st+3)
            reads(st+1, 0, 0)
            k('s_waitcnt lgkmcnt(8)')
        else:
            k('s_waitcnt lgkmcnt(0)')
        compute(1)
    k.nop(10)
    k(f'v_add_f32 v{s1a}, v{s1a}, v{s1b}')
    k(f'v_add_f32 v{qa}, v{qa}, v{qb}')
    for (op) in ('v_permlane16_swap_b32', 'v_permlane32_swap_b32'):
        k(f'v_mov_b32 v{t0}, v{s1a}'); k(f'v_mov_b32 v{t1}, v{qa}')
        k.nop(2)
        k(f'{op} v{s1a}, v{t0}'); k(f'{op} v{qa}, v{t1}')
        k.nop(2)
        k(f'v_add_f32 v{s1a}, v{s1a}, v{t0}'); k(f'v_add_f32 v{qa}, v{qa}, v{t1}')
    STATS = 131072; CSL = 131072+1024
    pair = k.v(2)
    k(f'v_mov_b32 v{pair}, v{s1a}'); k(f'v_mov_b32 v{pair+1}, v{qa}')
    k(f's_lshl_b32 s3, s{sWm}, 6'); k(f's_lshl_b32 s{sT}, s{sWn}, 4'); k(f's_add_u32 s3, s3, s{sT}')
    k(f'v_add_u32 v{vT}, s3, v{vN}')
    k(f'v_lshlrev_b32 v{vT}, 3, v{vT}')
    k(f'v_add_u32 v{vT}, {STATS}, v{vT}')
    k(f'ds_write_b64 v{vT}, {vr(pair,2)}')
    k(f's_lshl_b32 s3, s{sWn}, 1'); k(f's_add_u32 s3, s3, s{sWm}'); k(f's_lshl_b32 s3, s3, 6')
    k(f'v_lshlrev_b32 v{vT2}, 4, v{vG}')
    k(f'v_add_u32 v{vT2}, s3, v{vT2}')
    k(f'v_add_u32 v{vT2}, {CSL}, v{vT2}')
    k(f'ds_write_b128 v{vT2}, {vr(cs,4)}')
    k('s_waitcnt lgkmcnt(0)')
    k('s_barrier')
    st_ = [k.v(2) for _ in range(4)]
    csv = [k.v(4) for _ in range(2)]
    vto = [k.v() for _ in range(4)]
    for tl in range(4):
        k(f's_add_u32 s3, s{sWn}, {tl}'); k(f's_and_b32 s3, s3, 3'); k(f's_lshl_b32 s3, s3, 4')
        k(f's_lshl_b32 s{sT}, s{sWm}, 6'); k(f's_add_u32 s3, s3, s{sT}')
        k(f'v_add_u32 v{vT}, s3, v{vN}')
        k(f'v_lshlrev_b32 v{vT2}, 3, v{vT}')
        k(f'v_add_u32 v{vT2}, {STATS}, v{vT2}')
        k(f'ds_read_b64 {vr(st_[tl],2)}, v{vT2}')
        k(f's_lshl_b32 s3, s{sRb}, 7')
        k(f'v_add_u32 v{vT}, s3, v{vT}')
        k(f'v_lshlrev_b32 v{vto[tl]}, 4, v{vT}')
    vjo = [k.v() for _ in range(2)]; vsc = [k.v() for _ in range(2)]
    for pl in range(2):
        k(f's_xor_b32 s3, s{sWm}, {pl}'); k(f's_lshl_b32 s{sT}, s{sWn}, 1'); k(f's_add_u32 s3, s3, s{sT}')
        k(f's_lshl_b32 s{sT}, s3, 6')
        k(f'v_lshlrev_b32 v{vT2}, 4, v{vG}')
        k(f'v_add_u32 v{vT2}, s{sT}, v{vT2}')
        k(f'v_add_u32 v{vT2}, {CSL}, v{vT2}')
        k(f'ds_read_b128 {vr(csv[pl],4)}, v{vT2}')
        k(f's_lshl_b32 s3, s3, 1')
        k(f'v_lshrrev_b32 v{vT}, 1, v{vG}')
        k(f'v_add_u32 v{vT}, s3, v{vT}')
        k(f's_mul_i32 s{sT}, s{sCt}, 15')
        k(f'v_add_u32 v{vT2}, s{sT}, v{vT}')
        k(f'v_lshlrev_b32 v{vjo[pl]}, 15, v{vT2}')
        k(f'v_and_b32 v{vT3}, 1, v{vG}')
        k(f'v_lshl_add_u32 v{vjo[pl]}, v{vT3}, 3, v{vjo[pl]}')
        k(f'v_cmp_eq_u32 vcc, 15, v{vT}')
        k(f'v_mov_b32 v{vT3}, 0x7f000000')
        k.nop(1)
        k(f'v_cndmask_b32 v{vjo[pl]}, v{vjo[pl]}, v{vT3}, vcc')
        k(f'v_cmp_gt_u32 vcc, 80, v{vT2}')
        k(f'v_mov_b32 v{vT3}, 0x{f2u(QS):08x}')
        k(f'v_mov_b32 v{vsc[pl]}, 1.0')
        k.nop(1)
        k(f'v_cndmask_b32 v{vsc[pl]}, v{vsc[pl]}, v{vT3}, vcc')
    k('s_waitcnt lgkmcnt(0)')
    mean = [k.v() for _ in range(4)]; rr = [k.v() for _ in range(4)]
    for tl in range(4):
        k(f'v_mul_f32 v{mean[tl]}, 0x{f2u(1/640):08x}, v{st_[tl]}')
        k(f'v_mul_f32 v{t0}, 0x{f2u(1/640):08x}, v{st_[tl]+1}')
        k(f'v_fma_f32 v{t0}, -v{mean[tl]}, v{mean[tl]}, v{t0}')
        k(f'v_max_f32 v{t0}, 0, v{t0}')
        k(f'v_add_f32 v{t0}, 0x{f2u(1e-5):08x}, v{t0}')
        k(f'v_rsq_f32 v{rr[tl]}, v{t0}')
    k.nop(1)
    pk = [k.v(2) for _ in range(2)]
    n = 0
    for pl in range(2):
        for tl in range(4):
            a = acc[pl][tl]
            k(f'v_mul_f32 v{t1}, v{rr[tl]}, v{vsc[pl]}')
            for b in range(4):
                k(f'v_fma_f32 v{a+b}, -v{mean[tl]}, v{csv[pl]+b}, v{a+b}')
                k(f'v_mul_f32 v{a+b}, v{a+b}, v{t1}')
            p = pk[n%2]; n += 1
            k(f'v_cvt_pk_bf16_f32 v{p}, v{a}, v{a+1}')
            k(f'v_cvt_pk_bf16_f32 v{p+1}, v{a+2}, v{a+3}')
            k(f'v_add_u32 v{t2}, v{vjo[pl]}, v{vto[tl]}')
            k(f'buffer_store_dwordx2 {vr(p,2)}, v{t2}, {sr(sO,4)}, 0 offen')
    k.label(Lend)
    k('s_endpgm')
    return k

if __name__ == '__main__':
    print(build([make_k1()]))
```

```python
from asmlib import *
from k1 import QKV_OFF, O_OFF, PLANE, f2u

def make_k2():
    PS = 6400
    bank = [0, 64, 128, 0, 64]
    KB = [c*PS + bank[c] for c in range(5)]
    VB = [(5+c)*PS + bank[c] for c in range(5)]
    ONES = 10*PS + 192
    LDS = ONES + 6144
    k = Kern('k2_attn_kernel', 512, LDS)
    Lend = k.newlabel('end')
    k('s_cmp_ge_u32 s2, 256')
    k(f's_cbranch_scc1 {Lend}')
    sWs = k.s(2)
    k(f's_load_dwordx2 {sr(sWs,2)}, s[0:1], 80')
    sWave=k.s(); sPar=k.s(); sQi=k.s(); sV=k.s(); sQb=k.s(); sT=k.s(); sT2=k.s(); sTmin=k.s()
    vLane=k.v(); vT=k.v(); vT2=k.v(); vT3=k.v(); vN=k.v(); vHf=k.v()
    k(f'v_lshrrev_b32 v{vT}, 6, v0')
    k(f'v_and_b32 v{vLane}, 63, v0')
    k(f'v_readfirstlane_b32 s{sWave}, v{vT}')
    k(f'v_and_b32 v{vN}, 31, v{vLane}')
    k(f'v_lshrrev_b32 v{vHf}, 5, v{vLane}')
    k(f's_and_b32 s{sV}, s2, 15')
    k(f's_lshr_b32 s{sQb}, s2, 4')
    k(f's_and_b32 s{sPar}, s{sWave}, 1')
    k(f's_lshr_b32 s{sQi}, s{sWave}, 1')
    ones4 = k.v(4)
    for i in range(4): k(f'v_mov_b32 v{ones4+i}, 0x3f803f80')
    k(f'v_lshlrev_b32 v{vT}, 4, v0')
    k(f'v_add_u32 v{vT}, {ONES}, v{vT}')
    k(f'v_cmp_gt_u32 vcc, 384, v0')
    sEx = k.s(2)
    k(f's_and_saveexec_b64 {sr(sEx,2)}, vcc')
    Lsk = k.newlabel('sk')
    k(f's_cbranch_execz {Lsk}')
    k(f'ds_write_b128 v{vT}, {vr(ones4,4)}')
    k.label(Lsk)
    k(f's_mov_b64 exec, {sr(sEx,2)}')
    sQ=k.s(4); sO=k.s(4)
    k('s_waitcnt lgkmcnt(0)')
    k.srd(sQ, sWs, sWs+1, 240*PLANE, QKV_OFF)
    k.srd(sO, sWs, sWs+1, 80*PLANE, O_OFF)
    vL16 = k.v()
    k(f'v_lshlrev_b32 v{vL16}, 4, v{vLane}')
    Lnod = k.newlabel('nodma')
    k(f's_cmp_ge_u32 s{sWave}, 6')
    k(f's_cbranch_scc1 {Lnod}')
    k(f's_lshl_b32 s{sT}, s{sQb}, 7')
    k(f's_lshl_b32 s{sT2}, s{sWave}, 6')
    k(f's_add_u32 s{sT}, s{sT}, s{sT2}')
    k(f's_sub_i32 s{sT}, s{sT}, 256')
    k(f's_lshl_b32 s{sT2}, s{sT}, 4')
    k(f's_mul_i32 s3, s{sV}, {5*PLANE}')
    k(f's_add_u32 s{sT2}, s{sT2}, s3')
    k(f's_cmp_lt_i32 s{sT}, 0')
    k(f's_cselect_b32 s{sT2}, 0x40000000, s{sT2}')
    sSeg = k.s(); sOff = k.s()
    k(f's_lshl_b32 s{sSeg}, s{sWave}, 10')
    for p in range(10):
        c = p % 5
        j0 = (80 if p < 5 else 160) + c
        base = (KB[c] if p < 5 else VB[c])
        k(f's_add_u32 s{sOff}, s{sT2}, {j0*PLANE}')
        k(f's_add_u32 m0, s{sSeg}, {base}')
        k(f's_nop 0')
        k(f'buffer_load_dwordx4 v{vL16}, {sr(sQ,4)}, s{sOff} offen lds')
    k.label(Lnod)
    q0 = k.v(4); q1 = k.v(4)
    k(f's_mul_i32 s{sT}, s{sV}, 5')
    k(f's_mul_i32 s{sT2}, s{sPar}, 3')
    k(f's_add_u32 s{sT2}, s{sT2}, s{sT}')
    k(f'v_add_u32 v{vT}, s{sT2}, v{vHf}')
    vOch = k.v()
    k(f'v_lshlrev_b32 v{vOch}, 15, v{vT}')
    k(f's_lshl_b32 s3, s{sQb}, 7')
    k(f's_lshl_b32 s{sT2}, s{sQi}, 5')
    k(f's_add_u32 s3, s3, s{sT2}')
    k(f'v_add_u32 v{vT2}, s3, v{vN}')
    vTok = k.v()
    k(f'v_lshlrev_b32 v{vTok}, 4, v{vT2}')
    k(f'v_add_u32 v{vOch}, v{vOch}, v{vTok}')
    k(f'buffer_load_dwordx4 {vr(q0,4)}, v{vOch}, {sr(sQ,4)}, 0 offen')
    k(f's_add_u32 s{sT}, s{sT}, 2')
    k(f's_lshl_b32 s{sT}, s{sT}, 15')
    vOc = k.v()
    k(f'v_add_u32 v{vOc}, s{sT}, v{vTok}')
    k(f'buffer_load_dwordx4 {vr(q1,4)}, v{vOc}, {sr(sQ,4)}, 0 offen')
    sM = [k.s(2) for _ in range(16)]
    k(f'v_lshlrev_b32 v{vT}, 2, v{vHf}')
    k(f'v_sub_u32 v{vT}, v{vN}, v{vT}')
    for r in range(16):
        k(f'v_cmp_gt_i32 {sr(sM[r],2)}, {8*(r>>2)+(r&3)}, v{vT}')
    vK0=k.v(); vK1=k.v(); vV=k.v()
    k(f's_mul_i32 s{sT}, s{sPar}, {3*PS}')
    k(f's_lshl_b32 s{sT2}, s{sQi}, 9')
    k(f's_add_u32 s{sT}, s{sT}, s{sT2}')
    k(f'v_mul_u32_u24 v{vT}, {PS+64}, v{vHf}')
    k(f'v_lshl_add_u32 v{vT}, v{vN}, 4, v{vT}')
    k(f'v_add_u32 v{vK0}, s{sT}, v{vT}')
    k(f'v_lshlrev_b32 v{vT}, 4, v{vN}')
    k(f'v_add_u32 v{vT}, s{sT2}, v{vT}')
    k(f'v_add_u32 v{vK1}, {KB[2]}, v{vT}')
    vDh=k.v(); vR=k.v(); vC=k.v()
    k(f'v_lshrrev_b32 v{vDh}, 4, v{vLane}')
    k(f'v_and_b32 v{vDh}, 1, v{vDh}')
    k(f'v_lshrrev_b32 v{vR}, 2, v{vLane}')
    k(f'v_and_b32 v{vR}, 3, v{vR}')
    k(f'v_and_b32 v{vC}, 3, v{vLane}')
    k(f'v_lshl_add_u32 v{vT}, v{vHf}, 2, v{vR}')
    k(f'v_lshlrev_b32 v{vT}, 4, v{vT}')
    k(f'v_and_b32 v{vT2}, 1, v{vC}')
    k(f'v_mul_u32_u24 v{vT2}, {PS+64}, v{vT2}')
    k(f'v_lshrrev_b32 v{vT3}, 1, v{vC}')
    k(f'v_lshl_add_u32 v{vT2}, v{vT3}, 3, v{vT2}')
    k(f's_mul_i32 s{sT}, s{sPar}, {3*PS}')
    k(f's_add_u32 s{sT}, s{sT}, {VB[0]}')
    k(f's_add_u32 s{sT}, s{sT}, s{sT2}')
    k(f'v_add_u32 v{vT2}, s{sT}, v{vT2}')
    k(f's_lshl_b32 s{sT}, s{sPar}, 3')
    k(f's_add_u32 s{sT}, s{sT}, {VB[2]}')
    k(f's_add_u32 s{sT}, s{sT}, s{sT2}')
    k(f'v_mov_b32 v{vT3}, s{sT}')
    k(f'v_cmp_eq_u32 vcc, 1, v{vDh}')
    k.nop(1)
    k(f'v_cndmask_b32 v{vT2}, v{vT2}, v{vT3}, vcc')
    k(f'v_lshl_add_u32 v{vT3}, v{vDh}, 2, v{vC}')
    k(f'v_cmp_lt_u32 vcc, 4, v{vT3}')
    k(f'v_mov_b32 v{vT3}, {ONES}')
    k.nop(1)
    k(f'v_cndmask_b32 v{vT2}, v{vT2}, v{vT3}, vcc')
    k(f'v_add_u32 v{vV}, v{vT2}, v{vT}')
    k(f's_lshl_b32 s{sT}, s{sQb}, 2')
    k(f's_add_u32 s{sT}, s{sT}, s{sQi}')
    k(f's_sub_i32 s{sTmin}, 8, s{sT}')
    S = [k.v(16, 4) for _ in range(9)]
    kf = [[k.v(4), k.v(4)] for _ in range(3)]
    vf = [[k.v(4), k.v(4)] for _ in range(2)]
    O = k.v(16, 4)
    vNeg = k.v(); m0_=k.v(); m1_=k.v(); m2_=k.v(); m3_=k.v()
    k(f'v_mov_b32 v{vNeg}, 0x{f2u(-1e30):08x}')
    for i in range(16): k(f'v_mov_b32 v{O+i}, 0')
    for mm in (m0_,m1_,m2_,m3_): k(f'v_mov_b32 v{mm}, v{vNeg}')
    sMl = k.s(2); sMh = k.s(2)
    k(f's_cmp_eq_u32 s{sPar}, 0')
    k(f's_cselect_b32 s{sMl}, -1, 0'); k(f's_mov_b32 s{sMl+1}, 0')
    k(f's_cselect_b32 s{sMh}, 0, -1'); k(f's_mov_b32 s{sMh+1}, 0')
    k('s_waitcnt vmcnt(0) lgkmcnt(0)')
    k('s_barrier')
    k(f'v_cndmask_b32 v{q1}, 0, v{q1}, {sr(sMl,2)}')
    k(f'v_cndmask_b32 v{q1+1}, 0, v{q1+1}, {sr(sMl,2)}')
    k(f'v_cndmask_b32 v{q1+2}, 0, v{q1+2}, {sr(sMh,2)}')
    k(f'v_cndmask_b32 v{q1+3}, 0, v{q1+3}, {sr(sMh,2)}')
    def kread(t):
        b = kf[t % 3]
        k(f'ds_read_b128 {vr(b[0],4)}, v{vK0} offset:{t*512}')
        k(f'ds_read_b128 {vr(b[1],4)}, v{vK1} offset:{t*512}')
    def vread(t):
        b = vf[t % 2]
        for tp in range(2):
            for s_ in range(2):
                k(f'ds_read_b64_tr_b16 {vr(b[tp]+2*s_,2)}, v{vV} offset:{t*512+tp*256+s_*128}')
    ms = [m0_, m1_, m2_, m3_]
    def maxtile(t):
        for i in range(8):
            mm = ms[i % 4]
            k(f'v_max3_f32 v{mm}, v{S[t]+2*i}, v{S[t]+2*i+1}, v{mm}')
    kread(0); kread(1)
    zero16 = None
    for t in range(9):
        if t+2 < 9: kread(t+2)
        n_out = 2*(min(9, t+3) - (t+1))
        k(f's_waitcnt lgkmcnt({n_out})')
        b = kf[t % 3]
        k(f'v_mfma_f32_32x32x16_bf16 {vr(S[t],16)}, {vr(b[0],4)}, {vr(q0,4)}, 0')
        k(f'v_mfma_f32_32x32x16_bf16 {vr(S[t],16)}, {vr(b[1],4)}, {vr(q1,4)}, {vr(S[t],16)}')
        if 1 <= t-2 <= 7:
            Lok = k.newlabel('ok')
            maxtile_t = t-2
            k(f's_cmp_le_i32 s{sTmin}, {maxtile_t}')
            k(f's_cbranch_scc1 {Lok}')
            for i in range(16): k(f'v_mov_b32 v{S[maxtile_t]+i}, v{vNeg}')
            k.label(Lok)
            maxtile(maxtile_t)
        if t-2 == 0:
            Lok = k.newlabel('ok')
            k(f's_cmp_le_i32 s{sTmin}, 0')
            k(f's_cbranch_scc1 {Lok}')
            for i in range(16): k(f'v_mov_b32 v{S[0]+i}, v{vNeg}')
            k.label(Lok)
            for r in range(16): k(f'v_cndmask_b32 v{S[0]+r}, v{vNeg}, v{S[0]+r}, {sr(sM[r],2)}')
            maxtile(0)
    vread(0)
    k.nop(4)
    Lok = k.newlabel('ok')
    k(f's_cmp_le_i32 s{sTmin}, 7')
    k(f's_cbranch_scc1 {Lok}')
    for i in range(16): k(f'v_mov_b32 v{S[7]+i}, v{vNeg}')
    k.label(Lok)
    maxtile(7)
    k.nop(4)
    for r in range(16): k(f'v_cndmask_b32 v{S[8]+r}, v{S[8]+r}, v{vNeg}, {sr(sM[r],2)}')
    maxtile(8)
    k(f'v_max3_f32 v{m0_}, v{m0_}, v{m1_}, v{m2_}')
    k(f'v_max_f32 v{m0_}, v{m0_}, v{m3_}')
    k(f'v_mov_b32 v{m1_}, v{m0_}')
    k.nop(2)
    k(f'v_permlane32_swap_b32 v{m0_}, v{m1_}')
    k.nop(2)
    k(f'v_max_f32 v{m0_}, v{m0_}, v{m1_}')
    def softmax_tile(t):
        for i in range(16):
            k(f'v_sub_f32 v{S[t]+i}, v{S[t]+i}, v{m0_}')
        for i in range(16):
            k(f'v_exp_f32 v{S[t]+i}, v{S[t]+i}')
        k.nop(1)
        for i in range(8):
            k(f'v_cvt_pk_bf16_f32 v{S[t]+i}, v{S[t]+2*i}, v{S[t]+2*i+1}')
    softmax_tile(0)
    for t in range(9):
        if t+1 < 9: vread(t+1)
        k(f's_waitcnt lgkmcnt({4 if t+1 < 9 else 0})')
        b = vf[t % 2]
        k.nop(2)
        k(f'v_mfma_f32_32x32x16_bf16 {vr(O,16)}, {vr(b[0],4)}, {vr(S[t],4)}, {vr(O,16)}')
        k(f'v_mfma_f32_32x32x16_bf16 {vr(O,16)}, {vr(b[1],4)}, {vr(S[t]+4,4)}, {vr(O,16)}')
        if t+1 < 9: softmax_tile(t+1)
    k.nop(14)
    rl = k.v()
    k(f'v_rcp_f32 v{rl}, v{O+12}')
    k.nop(1)
    for i in range(12): k(f'v_mul_f32 v{O+i}, v{O+i}, v{rl}')
    pk = k.v(4); pc = k.v(2)
    for i in range(4): k(f'v_cvt_pk_bf16_f32 v{pk+i}, v{O+2*i}, v{O+2*i+1}')
    k(f'v_cvt_pk_bf16_f32 v{pc}, v{O+8}, v{O+9}')
    k(f'v_cvt_pk_bf16_f32 v{pc+1}, v{O+10}, v{O+11}')
    k(f'buffer_store_dwordx4 {vr(pk,4)}, v{vOch}, {sr(sO,4)}, 0 offen')
    k(f's_lshl_b32 s{sT}, s{sPar}, 3')
    k(f'v_add_u32 v{vOc}, s{sT}, v{vOc}')
    k(f'v_lshlrev_b32 v{vT}, 30, v{vHf}')
    k(f'v_or_b32 v{vOc}, v{vOc}, v{vT}')
    k(f'buffer_store_dwordx2 {vr(pc,2)}, v{vOc}, {sr(sO,4)}, 0 offen')
    k.label(Lend)
    k('s_endpgm')
    return k

if __name__ == '__main__':
    from k1 import make_k1
    print(build([make_k1(), make_k2()]))
```

```python
from asmlib import *
from k1 import QKV_OFF, O_OFF, H_OFF, ST_OFF, G_OFF, PLANE, f2u

def make_k35(kind):
    K = 640 if kind == 3 else 1536
    NST = K // 128
    NBUF = 5 if kind == 3 else 7
    SB = 20480
    k = Kern('k3_wo_kernel' if kind == 3 else 'k5_w2_kernel', 256, NBUF*SB)
    Lend = k.newlabel('end')
    k('s_cmp_ge_u32 s2, 256')
    k(f's_cbranch_scc1 {Lend}')
    sWp = k.s(2); sWs = k.s(2); sR = k.s(2); sB2 = k.s(2); sOut = k.s(2)
    if kind == 3:
        k(f's_load_dwordx2 {sr(sWp,2)}, s[0:1], 16')
        k(f's_load_dwordx2 {sr(sR,2)}, s[0:1], 0')
    else:
        k(f's_load_dwordx2 {sr(sWp,2)}, s[0:1], 48')
        k(f's_load_dwordx2 {sr(sB2,2)}, s[0:1], 56')
        k(f's_load_dwordx2 {sr(sOut,2)}, s[0:1], 64')
    k(f's_load_dwordx2 {sr(sWs,2)}, s[0:1], 80')
    sWave=k.s(); sTb=k.s(); sNb=k.s(); sT=k.s(); sT2=k.s()
    vLane=k.v(); vT=k.v(); vT2=k.v(); vT3=k.v(); vN=k.v(); vG=k.v()
    k(f'v_lshrrev_b32 v{vT}, 6, v0')
    k(f'v_and_b32 v{vLane}, 63, v0')
    k(f'v_readfirstlane_b32 s{sWave}, v{vT}')
    k(f'v_and_b32 v{vN}, 15, v{vLane}')
    k(f'v_lshrrev_b32 v{vG}, 4, v{vLane}')
    k(f's_and_b32 s{sT}, s2, 7'); k(f's_lshr_b32 s{sT2}, s2, 3')
    k(f's_lshl_b32 s{sTb}, s{sT}, 2'); k(f's_and_b32 s3, s{sT2}, 3'); k(f's_add_u32 s{sTb}, s{sTb}, s3')
    k(f's_lshr_b32 s{sNb}, s{sT2}, 2')
    vw = [k.v() for _ in range(5)]
    sMul = k.s()
    for b in range(5):
        k(f'v_add_u32 v{vT}, {64*b}, v{vLane}')
        k(f'v_mul_u32_u24 v{vT2}, 6554, v{vT}')
        k(f'v_lshrrev_b32 v{vT2}, 16, v{vT2}')
        k(f'v_mul_u32_u24 v{vT3}, 10, v{vT2}')
        k(f'v_sub_u32 v{vT}, v{vT}, v{vT3}')
        k(f'v_and_b32 v{vT3}, 0x13, v{vT2}')
        k(f'v_and_b32 v{vw[b]}, 4, v{vT2}')
        k(f'v_lshl_or_b32 v{vT3}, v{vw[b]}, 1, v{vT3}')
        k(f'v_and_b32 v{vw[b]}, 8, v{vT2}')
        k(f'v_lshrrev_b32 v{vw[b]}, 1, v{vw[b]}')
        k(f'v_or_b32 v{vT3}, v{vT3}, v{vw[b]}')
        k(f'v_mul_u32_u24 v{vT3}, 1280, v{vT3}')
        k(f'v_lshl_add_u32 v{vw[b]}, v{vT}, 4, v{vT3}')
    sWoff = k.s(); sAoff = k.s(); sLw = k.s()
    k(f's_mul_i32 s{sWoff}, s{sWave}, {32*1280}')
    k(f's_mul_i32 s3, s{sNb}, 160')
    k(f's_add_u32 s{sWoff}, s{sWoff}, s3')
    k(f's_mul_i32 s{sLw}, s{sWave}, 5120')
    vTok = k.v(); vA = k.v()
    k(f's_lshl_b32 s3, s{sTb}, 6'); k(f's_lshl_b32 s{sT}, s{sWave}, 4'); k(f's_add_u32 s3, s3, s{sT}')
    k(f'v_add_u32 v{vTok}, s3, v{vN}')
    k(f'v_lshlrev_b32 v{vA}, 15, v{vG}')
    k(f'v_lshl_add_u32 v{vA}, v{vTok}, 4, v{vA}')
    k(f's_mov_b32 s{sAoff}, 0')
    vW = k.v()
    k(f'v_lshrrev_b32 v{vT}, 1, v{vG}')
    k(f'v_lshlrev_b32 v{vT}, 4, v{vT}')
    k(f'v_and_b32 v{vT2}, 1, v{vG}')
    k(f'v_lshl_add_u32 v{vT}, v{vT2}, 2, v{vT}')
    k(f'v_lshrrev_b32 v{vT2}, 2, v{vN}')
    k(f'v_add_u32 v{vT}, v{vT}, v{vT2}')
    k(f'v_mul_u32_u24 v{vT}, 160, v{vT}')
    k(f'v_and_b32 v{vT2}, 3, v{vLane}')
    k(f'v_lshlrev_b32 v{vT2}, 3, v{vT2}')
    k(f'v_add_u32 v{vW}, v{vT}, v{vT2}')
    NAF = NBUF
    af = [[k.v(4) for _ in range(4)] for _ in range(NAF)]
    wf = [[k.v(4) for _ in range(5)] for _ in range(2)]
    acc = [k.v(4) for _ in range(5)]
    for T in range(5):
        for i in range(4): k(f'v_mov_b32 v{acc[T]+i}, 0')
    sWd=k.s(4); sA=k.s(4); sRd=k.s(4); sO=k.s(4); sSt=k.s(4); sBd=k.s(4)
    k('s_waitcnt lgkmcnt(0)')
    k.srd(sWd, sWp, sWp+1, K*1280)
    if kind == 3:
        k.srd(sA, sWs, sWs+1, 80*PLANE, O_OFF)
        k.srd(sRd, sR, sR+1, 2048*1280)
        k.srd(sO, sWs, sWs+1, 80*PLANE, H_OFF)
        k.srd(sSt, sWs, sWs+1, 8*2048*8, ST_OFF)
    else:
        k.srd(sA, sWs, sWs+1, 192*PLANE, G_OFF)
        k.srd(sRd, sWs, sWs+1, 80*PLANE, H_OFF)
        k.srd(sO, sOut, sOut+1, 2048*1280)
        k.srd(sBd, sB2, sB2+1, 1280)
    def issue(st):
        buf = (st % NBUF)*SB
        for b in range(5):
            k(f's_add_u32 m0, s{sLw}, {buf + b*1024}')
            k('s_nop 0')
            k(f'buffer_load_dwordx4 v{vw[b]}, {sr(sWd,4)}, s{sWoff} offen lds')
        k(f's_add_u32 s{sWoff}, s{sWoff}, {128*1280}')
        for kk in range(4):
            k(f'buffer_load_dwordx4 {vr(af[st % NAF][kk],4)}, v{vA}, {sr(sA,4)}, s{sAoff} offen')
            k(f's_add_u32 s{sAoff}, s{sAoff}, {4*PLANE}')
    npre = min(NST, NBUF-1) if NST > NBUF else NST
    for st in range(npre): issue(st)
    res = [k.v(2) for _ in range(5)]
    vRo = k.v(); vHo = k.v()
    k(f'v_mul_u32_u24 v{vRo}, 1280, v{vTok}')
    k(f's_mul_i32 s3, s{sNb}, 160')
    k(f'v_lshl_add_u32 v{vRo}, v{vG}, 3, v{vRo}')
    k(f'v_add_u32 v{vRo}, s3, v{vRo}')
    k(f's_mul_i32 s3, s{sNb}, 10')
    k(f'v_lshrrev_b32 v{vT}, 1, v{vG}')
    k(f'v_add_u32 v{vT}, s3, v{vT}')
    k(f'v_lshlrev_b32 v{vHo}, 15, v{vT}')
    k(f'v_lshl_add_u32 v{vHo}, v{vTok}, 4, v{vHo}')
    k(f'v_and_b32 v{vT}, 1, v{vG}')
    k(f'v_lshl_add_u32 v{vHo}, v{vT}, 3, v{vHo}')
    sPl = k.s()
    nres = 0
    if kind == 3:
        for T in range(5):
            k(f'buffer_load_dwordx2 {vr(res[T],2)}, v{vRo}, {sr(sRd,4)}, 0 offen offset:{32*T}'); nres += 1
    else:
        bia = [k.v(2) for _ in range(5)]
        vBo = k.v()
        k(f's_mul_i32 s3, s{sNb}, 160')
        k(f'v_lshlrev_b32 v{vBo}, 3, v{vG}')
        k(f'v_add_u32 v{vBo}, s3, v{vBo}')
        for T in range(5):
            k(f's_mov_b32 s{sPl}, {2*T*PLANE}')
            k(f'buffer_load_dwordx2 {vr(res[T],2)}, v{vHo}, {sr(sRd,4)}, s{sPl} offen'); nres += 1
            k(f'buffer_load_dwordx2 {vr(bia[T],2)}, v{vBo}, {sr(sBd,4)}, 0 offen offset:{32*T}'); nres += 1
    issued = [('st', st) for st in range(npre) for _ in range(9)] + [('res', 0)]*nres
    def wait_stage(st):
        last = max(i for i, x in enumerate(issued) if x == ('st', st))
        n = len(issued) - 1 - last
        k(f's_waitcnt vmcnt({min(n,63)})')
    vWc = k.v()
    def wreads(st, kk, S):
        buf = (st % NBUF)*SB
        off = buf + kk*5120
        hi = off // 32768 * 32768
        lo = off - hi
        if cur_hi[0] != hi:
            k(f'v_add_u32 v{vWc}, {hi}, v{vW}'); cur_hi[0] = hi
        for T in range(5):
            for s_ in range(2):
                k(f'ds_read_b64_tr_b16 {vr(wf[S][T]+2*s_,2)}, v{vWc} offset:{lo + 1280*s_ + 32*T}')
    cur_hi = [None]
    def mf(st, kk, S):
        for T in range(5):
            k(f'v_mfma_f32_16x16x32_bf16 {vr(acc[T],4)}, {vr(wf[S][T],4)}, {vr(af[st % NAF][kk],4)}, {vr(acc[T],4)}')
    seq = [(st, kk) for st in range(NST) for kk in range(4)]
    wait_stage(0); k('s_barrier')
    wreads(0, 0, 0)
    for i, (st, kk) in enumerate(seq):
        S = i % 2
        if i+1 < len(seq):
            st2, kk2 = seq[i+1]
            if kk2 == 0:
                wait_stage(st2); k('s_barrier')
                nxt = st2 + npre - 1
                if NST > NBUF and nxt < NST and nxt >= npre:
                    issue(nxt); issued.extend([('st', nxt)]*9)
            wreads(st2, kk2, 1-S)
            k('s_waitcnt lgkmcnt(10)')
        else:
            k('s_waitcnt lgkmcnt(0)')
        mf(st, kk, S)
    k('s_waitcnt vmcnt(0)')
    k.nop(10)
    t0=k.v(); t1=k.v(); t2=k.v(); t3=k.v()
    pk = [k.v(2) for _ in range(2)]
    if kind == 3:
        s1=k.v(); q1=k.v()
        k(f'v_mov_b32 v{s1}, 0'); k(f'v_mov_b32 v{q1}, 0')
    for T in range(5):
        a = acc[T]
        k(f'v_lshlrev_b32 v{t0}, 16, v{res[T]}'); k(f'v_and_b32 v{t1}, 0xffff0000, v{res[T]}')
        k(f'v_lshlrev_b32 v{t2}, 16, v{res[T]+1}'); k(f'v_and_b32 v{t3}, 0xffff0000, v{res[T]+1}')
        for i, t in enumerate((t0,t1,t2,t3)): k(f'v_add_f32 v{a+i}, v{a+i}, v{t}')
        if kind == 5:
            k(f'v_lshlrev_b32 v{t0}, 16, v{bia[T]}'); k(f'v_and_b32 v{t1}, 0xffff0000, v{bia[T]}')
            k(f'v_lshlrev_b32 v{t2}, 16, v{bia[T]+1}'); k(f'v_and_b32 v{t3}, 0xffff0000, v{bia[T]+1}')
            for i, t in enumerate((t0,t1,t2,t3)): k(f'v_add_f32 v{a+i}, v{a+i}, v{t}')
        p = pk[T % 2]
        k(f'v_cvt_pk_bf16_f32 v{p}, v{a}, v{a+1}')
        k(f'v_cvt_pk_bf16_f32 v{p+1}, v{a+2}, v{a+3}')
        if kind == 3:
            k(f's_mov_b32 s{sPl}, {2*T*PLANE}')
            k(f'buffer_store_dwordx2 {vr(p,2)}, v{vHo}, {sr(sO,4)}, s{sPl} offen')
            k(f'v_lshlrev_b32 v{t0}, 16, v{p}'); k(f'v_and_b32 v{t1}, 0xffff0000, v{p}')
            k(f'v_lshlrev_b32 v{t2}, 16, v{p+1}'); k(f'v_and_b32 v{t3}, 0xffff0000, v{p+1}')
            for t in (t0,t1,t2,t3):
                k(f'v_add_f32 v{s1}, v{s1}, v{t}'); k(f'v_fmac_f32 v{q1}, v{t}, v{t}')
        else:
            k(f'buffer_store_dwordx2 {vr(p,2)}, v{vRo}, {sr(sO,4)}, 0 offen offset:{32*T}')
    if kind == 3:
        for op in ('v_permlane16_swap_b32', 'v_permlane32_swap_b32'):
            k(f'v_mov_b32 v{t0}, v{s1}'); k(f'v_mov_b32 v{t1}, v{q1}')
            k.nop(2)
            k(f'{op} v{s1}, v{t0}'); k(f'{op} v{q1}, v{t1}')
            k.nop(2)
            k(f'v_add_f32 v{s1}, v{s1}, v{t0}'); k(f'v_add_f32 v{q1}, v{q1}, v{t1}')
        pr = k.v(2)
        k(f'v_mov_b32 v{pr}, v{s1}'); k(f'v_mov_b32 v{pr+1}, v{q1}')
        k(f's_lshl_b32 s3, s{sNb}, 14')
        k(f'v_lshlrev_b32 v{vT}, 3, v{vTok}')
        k(f'v_add_u32 v{vT}, s3, v{vT}')
        k(f'v_lshl_or_b32 v{vT}, v{vG}, 28, v{vT}')
        k(f'buffer_store_dwordx2 {vr(pr,2)}, v{vT}, {sr(sSt,4)}, 0 offen')
    k.label(Lend)
    k('s_endpgm')
    return k
```

```python
from asmlib import *
from k1 import QKV_OFF, O_OFF, H_OFF, ST_OFF, G_OFF, PLANE, f2u
import math

def make_k4():
    k = Kern('k4_w1_kernel', 512, 131072+1024)
    NST = 10
    Lend = k.newlabel('end')
    k('s_cmp_ge_u32 s2, 256')
    k(f's_cbranch_scc1 {Lend}')
    sWp = k.s(2); sB1 = k.s(2); sWs = k.s(2)
    k(f's_load_dwordx2 {sr(sWp,2)}, s[0:1], 32')
    k(f's_load_dwordx2 {sr(sB1,2)}, s[0:1], 40')
    k(f's_load_dwordx2 {sr(sWs,2)}, s[0:1], 80')
    sWave=k.s(); sWm=k.s(); sWn=k.s(); sRb=k.s(); sFt=k.s(); sT=k.s(); sT2=k.s(); sMul=k.s()
    vLane=k.v(); vT=k.v(); vT2=k.v(); vT3=k.v(); vN=k.v(); vG=k.v()
    k(f'v_lshrrev_b32 v{vT}, 6, v0')
    k(f'v_and_b32 v{vLane}, 63, v0')
    k(f'v_readfirstlane_b32 s{sWave}, v{vT}')
    k(f'v_and_b32 v{vN}, 15, v{vLane}')
    k(f'v_lshrrev_b32 v{vG}, 4, v{vLane}')
    k(f's_and_b32 s{sT}, s2, 7'); k(f's_lshr_b32 s{sT2}, s2, 3')
    k(f's_lshl_b32 s{sRb}, s{sT}, 1'); k(f's_and_b32 s3, s{sT2}, 1'); k(f's_add_u32 s{sRb}, s{sRb}, s3')
    k(f's_lshr_b32 s{sFt}, s{sT2}, 1')
    k(f's_lshr_b32 s{sWm}, s{sWave}, 1'); k(f's_and_b32 s{sWn}, s{sWave}, 1')
    vw = k.v(); vh = k.v()
    k(f's_and_b32 s3, s{sWave}, 1'); k(f's_lshl_b32 s3, s3, 2')
    k(f'v_add_u32 v{vT}, s3, v{vG}')
    k(f'v_lshlrev_b32 v{vT}, 1, v{vT}')
    k(f'v_sub_u32 v{vT}, v{vN}, v{vT}')
    k(f'v_and_b32 v{vT}, 15, v{vT}')
    k(f's_lshl_b32 s3, s{sWave}, 3')
    k(f'v_add_u32 v{vT2}, s3, v{vG}')
    k(f'v_mul_u32_u24 v{vT2}, 3072, v{vT2}')
    k(f's_mul_i32 s3, s{sFt}, 192')
    k(f'v_lshl_add_u32 v{vw}, v{vT}, 4, v{vT2}')
    k(f'v_add_u32 v{vw}, s3, v{vw}')
    k(f'v_cmp_lt_u32 vcc, 11, v{vT}')
    k(f'v_mov_b32 v{vT3}, 0x7f000000')
    k.nop(1)
    k(f'v_cndmask_b32 v{vw}, v{vw}, v{vT3}, vcc')
    k(f'v_lshlrev_b32 v{vh}, 4, v{vLane}')
    vha = k.v(); vwa = [k.v() for _ in range(3)]
    k(f'v_lshlrev_b32 v{vT}, 11, v{vG}')
    k(f's_lshl_b32 s3, s{sWm}, 5')
    k(f'v_add_u32 v{vT2}, s3, v{vN}')
    k(f'v_lshl_add_u32 v{vha}, v{vT2}, 4, v{vT}')
    vR=k.v(); vC=k.v()
    k(f'v_lshrrev_b32 v{vR}, 2, v{vN}')
    k(f'v_and_b32 v{vC}, 3, v{vLane}')
    k(f'v_and_b32 v{vT}, 1, v{vG}')
    k(f'v_lshl_add_u32 v{vT}, v{vT}, 2, v{vR}')
    k(f'v_lshlrev_b32 v{vT}, 1, v{vT}')
    k(f'v_lshrrev_b32 v{vT2}, 1, v{vC}')
    k(f'v_add_u32 v{vT}, v{vT}, v{vT2}')
    k(f'v_lshl_add_u32 v{vT2}, v{vG}, 3, v{vR}')
    k(f'v_lshlrev_b32 v{vT2}, 8, v{vT2}')
    k(f'v_and_b32 v{vT3}, 1, v{vC}')
    k(f'v_lshl_add_u32 v{vT2}, v{vT3}, 3, v{vT2}')
    sTg = [k.s() for _ in range(3)]
    for pl in range(3):
        k(f's_add_u32 s3, s{sWm}, {pl}')
        k(f's_cmp_ge_u32 s3, 3'); k(f's_cselect_b32 s{sT}, 3, 0'); k(f's_sub_u32 s3, s3, s{sT}')
        k(f's_cmp_ge_u32 s3, 3'); k(f's_cselect_b32 s{sT}, 3, 0'); k(f's_sub_u32 s3, s3, s{sT}')
        k(f's_mul_i32 s{sT}, s{sWn}, 3')
        k(f's_add_u32 s{sTg[pl]}, s3, s{sT}')
        k(f's_lshl_b32 s3, s{sTg[pl]}, 1')
        k(f'v_add_u32 v{vT3}, s3, v{vT}')
        k(f'v_and_b32 v{vT3}, 15, v{vT3}')
        k(f'v_lshl_add_u32 v{vwa[pl]}, v{vT3}, 4, v{vT2}')
    hf = [[k.v(4) for _ in range(2)] for _ in range(2)]
    wf = [[k.v(4) for _ in range(3)] for _ in range(2)]
    acc = [[k.v(4) for _ in range(2)] for _ in range(3)]
    cs = k.v(4); ones = k.v(4)
    for pl in range(3):
        for tl in range(2):
            for i in range(4): k(f'v_mov_b32 v{acc[pl][tl]+i}, 0')
    for i in range(4):
        k(f'v_mov_b32 v{cs+i}, 0'); k(f'v_mov_b32 v{ones+i}, 0x3f803f80')
    sH=k.s(4); sW=k.s(4); sO=k.s(4); sSt=k.s(4); sBd=k.s(4)
    sHoff=k.s(); sWoff=k.s(); sWoff2=k.s(); sWv=k.s()
    k(f's_lshl_b32 s{sWv}, s{sWave}, 11')
    k(f's_lshl_b32 s{sHoff}, s{sWave}, 15'); k(f's_lshl_b32 s3, s{sRb}, 11'); k(f's_add_u32 s{sHoff}, s{sHoff}, s3')
    k(f's_mov_b32 s{sWoff}, 0'); k(f's_mov_b32 s{sWoff2}, {4*3072}')
    k('s_waitcnt lgkmcnt(0)')
    k.srd(sH, sWs, sWs+1, 80*PLANE, H_OFF)
    k.srd(sW, sWp, sWp+1, 640*3072)
    k.srd(sO, sWs, sWs+1, 192*PLANE, G_OFF)
    k.srd(sSt, sWs, sWs+1, 8*2048*8, ST_OFF)
    k.srd(sBd, sB1, sB1+1, 3072)
    def dma(st):
        b = (st % 4)*32768
        k(f's_add_u32 m0, s{sWv}, {b}')
        k('s_nop 0')
        k(f'buffer_load_dwordx4 v{vh}, {sr(sH,4)}, s{sHoff} offen lds')
        k(f'buffer_load_dwordx4 v{vh}, {sr(sH,4)}, s{sHoff} offen offset:1024 lds')
        k(f's_add_u32 m0, s{sWv}, {b+16384}')
        k('s_nop 0')
        k(f'buffer_load_dwordx4 v{vw}, {sr(sW,4)}, s{sWoff} offen lds')
        k(f's_add_u32 m0, s{sWv}, {b+16384+1024}')
        k('s_nop 0')
        k(f'buffer_load_dwordx4 v{vw}, {sr(sW,4)}, s{sWoff2} offen lds')
        k(f's_add_u32 s{sHoff}, s{sHoff}, {8*PLANE}')
        k(f's_add_u32 s{sWoff}, s{sWoff}, {64*3072}')
        k(f's_add_u32 s{sWoff2}, s{sWoff2}, {64*3072}')
    for st in range(3): dma(st)
    vTokL = k.v()
    stp = [[k.v(2) for _ in range(2)] for _ in range(2)]
    k(f's_lshl_b32 s3, s{sRb}, 7'); k(f's_lshl_b32 s{sT}, s{sWm}, 5'); k(f's_add_u32 s3, s3, s{sT}')
    k(f'v_add_u32 v{vTokL}, s3, v{vN}')
    k(f'v_lshlrev_b32 v{vT}, 15, v{vG}')
    k(f'v_lshl_add_u32 v{vT}, v{vTokL}, 3, v{vT}')
    for tl in range(2):
        for p in range(2):
            k(f'v_add_u32 v{vT2}, {p*16384 + tl*128}, v{vT}')
            k(f'buffer_load_dwordx2 {vr(stp[tl][p],2)}, v{vT2}, {sr(sSt,4)}, 0 offen')
    bia = [k.v(2) for _ in range(3)]
    for pl in range(3):
        k(f's_mul_i32 s3, s{sFt}, 192'); k(f's_lshl_b32 s{sT}, s{sTg[pl]}, 5'); k(f's_add_u32 s3, s3, s{sT}')
        k(f'v_lshlrev_b32 v{vT2}, 3, v{vG}')
        k(f'v_add_u32 v{vT2}, s3, v{vT2}')
        k(f'buffer_load_dwordx2 {vr(bia[pl],2)}, v{vT2}, {sr(sBd,4)}, 0 offen')
    NEXTRA = 7
    hi = [False]
    def set_hi(want):
        if hi[0] != want:
            k(f'v_xor_b32 v{vha}, 0x10000, v{vha}')
            for pl in range(3): k(f'v_xor_b32 v{vwa[pl]}, 0x10000, v{vwa[pl]}')
            hi[0] = want
    def reads(st, kp, S):
        b = st % 4
        set_hi(b >= 2)
        base = (b & 1)*32768
        for pl in range(3):
            for s_ in range(2):
                k(f'ds_read_b64_tr_b16 {vr(wf[S][pl]+2*s_,2)}, v{vwa[pl]} offset:{base+16384+kp*8192+s_*1024}')
        for tl in range(2):
            k(f'ds_read_b128 {vr(hf[S][tl],4)}, v{vha} offset:{base+kp*8192+tl*256}')
    def compute(S):
        for tl in range(2):
            for pl in range(3):
                k(f'v_mfma_f32_16x16x32_bf16 {vr(acc[pl][tl],4)}, {vr(wf[S][pl],4)}, {vr(hf[S][tl],4)}, {vr(acc[pl][tl],4)}')
        k(f'v_mfma_f32_16x16x32_bf16 {vr(cs,4)}, {vr(wf[S][0],4)}, {vr(ones,4)}, {vr(cs,4)}')
    k(f's_waitcnt vmcnt({8+NEXTRA})')
    k('s_barrier')
    reads(0, 0, 0)
    for st in range(NST):
        reads(st, 1, 1)
        k('s_waitcnt lgkmcnt(8)')
        compute(0)
        if st < NST-1:
            n = 4 if st+2 <= NST-1 else 0
            if st+1 <= 2: n += NEXTRA
            if st+1 == 2: n = (4 if False else 0) + NEXTRA if False else n
            order = [('s',0)]*4+[('s',1)]*4+[('s',2)]*4+[('x',0)]*NEXTRA
            for s2 in range(3, min(st+2, NST-1)+1): order += [('s',s2)]*4
            last = max(i for i,x in enumerate(order) if x == ('s', st+1))
            n = len(order)-1-last
            k(f's_waitcnt vmcnt({n})')
            k('s_barrier')
            if st+3 <= NST-1: dma(st+3)
            reads(st+1, 0, 0)
            k('s_waitcnt lgkmcnt(8)')
        else:
            k('s_waitcnt lgkmcnt(0)')
        compute(1)
    k('s_waitcnt vmcnt(0)')
    k.nop(10)
    CSL = 131072
    k(f's_lshl_b32 s3, s{sTg[0]}, 6')
    k(f'v_lshlrev_b32 v{vT2}, 4, v{vG}')
    k(f'v_add_u32 v{vT2}, s3, v{vT2}')
    k(f'v_add_u32 v{vT2}, {CSL}, v{vT2}')
    k(f'ds_write_b128 v{vT2}, {vr(cs,4)}')
    t0=k.v(); t1=k.v(); t2=k.v(); t3=k.v()
    mean=[k.v() for _ in range(2)]; RR=[k.v() for _ in range(2)]
    for tl in range(2):
        a = stp[tl][0]; b = stp[tl][1]
        k(f'v_add_f32 v{a}, v{a}, v{b}'); k(f'v_add_f32 v{a+1}, v{a+1}, v{b+1}')
        for op in ('v_permlane16_swap_b32', 'v_permlane32_swap_b32'):
            k(f'v_mov_b32 v{t0}, v{a}'); k(f'v_mov_b32 v{t1}, v{a+1}')
            k.nop(2)
            k(f'{op} v{a}, v{t0}'); k(f'{op} v{a+1}, v{t1}')
            k.nop(2)
            k(f'v_add_f32 v{a}, v{a}, v{t0}'); k(f'v_add_f32 v{a+1}, v{a+1}, v{t1}')
        k(f'v_mul_f32 v{mean[tl]}, 0x{f2u(1/640):08x}, v{a}')
        k(f'v_mul_f32 v{t0}, 0x{f2u(1/640):08x}, v{a+1}')
        k(f'v_fma_f32 v{t0}, -v{mean[tl]}, v{mean[tl]}, v{t0}')
        k(f'v_max_f32 v{t0}, 0, v{t0}')
        k(f'v_add_f32 v{t1}, 0x{f2u(1e-5):08x}, v{t0}')
        k(f'v_rsq_f32 v{t1}, v{t1}')
        k.nop(1)
        k(f'v_mul_f32 v{t2}, v{t1}, v{t1}')
        k(f'v_mul_f32 v{t2}, v{t2}, v{t0}')
        k(f'v_add_f32 v{t2}, 0x{f2u(1e-5):08x}, v{t2}')
        k(f'v_rsq_f32 v{t2}, v{t2}')
        k.nop(1)
        k(f'v_mul_f32 v{RR[tl]}, v{t1}, v{t2}')
    k('s_waitcnt lgkmcnt(0)')
    k('s_barrier')
    csv = [k.v(4) for _ in range(3)]
    vjo = [k.v() for _ in range(3)]
    for pl in range(3):
        k(f's_lshl_b32 s3, s{sTg[pl]}, 6')
        k(f'v_lshlrev_b32 v{vT2}, 4, v{vG}')
        k(f'v_add_u32 v{vT2}, s3, v{vT2}')
        k(f'v_add_u32 v{vT2}, {CSL}, v{vT2}')
        k(f'ds_read_b128 {vr(csv[pl],4)}, v{vT2}')
        k(f's_mul_i32 s3, s{sFt}, 12'); k(f's_lshl_b32 s{sT}, s{sTg[pl]}, 1'); k(f's_add_u32 s3, s3, s{sT}')
        k(f'v_lshrrev_b32 v{vT}, 1, v{vG}')
        k(f'v_add_u32 v{vT}, s3, v{vT}')
        k(f'v_lshlrev_b32 v{vjo[pl]}, 15, v{vT}')
        k(f'v_and_b32 v{vT3}, 1, v{vG}')
        k(f'v_lshl_add_u32 v{vjo[pl]}, v{vT3}, 3, v{vjo[pl]}')
        k(f'v_lshl_add_u32 v{vjo[pl]}, v{vTokL}, 4, v{vjo[pl]}')
    k('s_waitcnt lgkmcnt(0)')
    c = math.sqrt(2/math.pi); L2E = 1.4426950408889634
    k1c = -2*c*L2E; k2c = -2*c*0.044715*L2E
    sK1 = k.s(); sK2 = k.s()
    k(f's_mov_b32 s{sK1}, 0x{f2u(k1c):08x}'); k(f's_mov_b32 s{sK2}, 0x{f2u(k2c):08x}')
    vK1 = k.v()
    k(f'v_mov_b32 v{vK1}, s{sK1}')
    bf = k.v(4); e4 = k.v(4)
    pk = [k.v(2) for _ in range(2)]
    n = 0
    for pl in range(3):
        k(f'v_lshlrev_b32 v{bf}, 16, v{bia[pl]}'); k(f'v_and_b32 v{bf+1}, 0xffff0000, v{bia[pl]}')
        k(f'v_lshlrev_b32 v{bf+2}, 16, v{bia[pl]+1}'); k(f'v_and_b32 v{bf+3}, 0xffff0000, v{bia[pl]+1}')
        for tl in range(2):
            a = acc[pl][tl]
            for b in range(4):
                k(f'v_fma_f32 v{a+b}, -v{mean[tl]}, v{csv[pl]+b}, v{a+b}')
            for b in range(4):
                k(f'v_fma_f32 v{a+b}, v{RR[tl]}, v{a+b}, v{bf+b}')
            for b in range(4):
                k(f'v_mul_f32 v{e4+b}, v{a+b}, v{a+b}')
            for b in range(4):
                k(f'v_fma_f32 v{e4+b}, v{e4+b}, s{sK2}, v{vK1}')
            for b in range(4):
                k(f'v_mul_f32 v{e4+b}, v{e4+b}, v{a+b}')
            for b in range(4):
                k(f'v_exp_f32 v{e4+b}, v{e4+b}')
            k.nop(1)
            for b in range(4):
                k(f'v_add_f32 v{e4+b}, 1.0, v{e4+b}')
            for b in range(4):
                k(f'v_rcp_f32 v{e4+b}, v{e4+b}')
            k.nop(1)
            for b in range(4):
                k(f'v_mul_f32 v{a+b}, v{a+b}, v{e4+b}')
            p = pk[n % 2]; n += 1
            k(f'v_cvt_pk_bf16_f32 v{p}, v{a}, v{a+1}')
            k(f'v_cvt_pk_bf16_f32 v{p+1}, v{a+2}, v{a+3}')
            k(f'buffer_store_dwordx2 {vr(p,2)}, v{vjo[pl]}, {sr(sO,4)}, 0 offen offset:{tl*256}')
    k.label(Lend)
    k('s_endpgm')
    return k
```

```python
import sys
from asmlib import *
from k1 import make_k1
from k2 import make_k2
from k35 import make_k35
from k4 import make_k4
ks = [make_k1(), make_k2(), make_k35(3), make_k4(), make_k35(5)]
open(sys.argv[1], 'w').write(build(ks))
for k in ks: print(k.name, 'vgpr', k.v_max, 'sgpr', k.s_max, 'lds', k.lds, 'lines', len(k.lines))
```
